```python
import torch

def _softmax(x, axis=-1):
    return torch.softmax(x, dim=axis)
def _gelu(x):
    return torch.nn.functional.gelu(x, approximate="tanh")
def _silu(x):
    return torch.nn.functional.silu(x)
def _sigmoid(x):
    return torch.sigmoid(x)
def _layernorm(x, axis=-1, eps=1e-5):
    m = x.mean(dim=axis, keepdim=True)
    v = x.var(dim=axis, keepdim=True, unbiased=False)
    return (x - m) / torch.sqrt(v + eps)
def _scatter_add(tgt, idx, src, axis=0):
    return tgt.clone().index_add_(axis, idx, src)
def _segment_sum(src, seg, n):
    out = torch.zeros((n,) + src.shape[1:], dtype=src.dtype)
    return out.index_add_(0, seg, src)
def _pad(x, pw):
    flat = tuple(v for pair in reversed(pw) for v in pair)
    return torch.nn.functional.pad(x, flat)

kernel_name = 'parallel_sum__ssm_conv_s4__dense_activation_squared_relu__prompt'

def setup_inputs():

    _w = (lambda a: (lambda t: t.to(torch.bfloat16) if t.is_floating_point() else t)(torch.as_tensor(a)))
    def _A_setup():
        B, L, D, N = 1, 2048, 512, 128
        A_re = -(lambda _x: torch.exp(torch.as_tensor(_x)))((lambda *s: torch.randn(*s, dtype=torch.bfloat16) * 3.2)(D, N))
        A_im = torch.pi * (lambda *s: torch.randn(*s, dtype=torch.bfloat16) * 0.2)(D, N)
        B_re = (lambda *s: torch.randn(*s, dtype=torch.bfloat16) * 0.4)(D, N)
        B_im = (lambda *s: torch.randn(*s, dtype=torch.bfloat16) * 0.4)(D, N)
        C_re = (lambda *s: torch.randn(*s, dtype=torch.bfloat16) * 0.4)(D, N)
        C_im = (lambda *s: torch.randn(*s, dtype=torch.bfloat16) * 0.4)(D, N)
        log_dt = (lambda *s: torch.randn(*s, dtype=torch.bfloat16) * 0.2)(D) * 0.5 - 4.0
        Dskip = (lambda *s: torch.randn(*s, dtype=torch.bfloat16) * 0.4)(D)
        return {
            "u": _w((lambda *s: torch.randn(*s, dtype=torch.bfloat16) * 0.05)(B, L, D)),
            "A_re": _w(A_re),
            "A_im": _w(A_im),
            "B_re": _w(B_re),
            "B_im": _w(B_im),
            "C_re": _w(C_re),
            "C_im": _w(C_im),
            "log_dt": _w(log_dt),
            "Dskip": _w(Dskip),
        }
    _A_in = _A_setup()

    def _B_setup():
        B, S, D, F = 1, 2048, 512, 1376
        return {
            "x": _w((lambda *s: torch.randn(*s, dtype=torch.bfloat16) * 0.05)(B, S, D)),
            "w1": _w((lambda *s: torch.randn(*s, dtype=torch.bfloat16) * 0.05)(D, F)),
            "b1": _w((lambda *s: torch.randn(*s, dtype=torch.bfloat16) * 0.2)(F)),
            "w2": _w((lambda *s: torch.randn(*s, dtype=torch.bfloat16) * 0.05)(F, D)),
            "b2": _w((lambda *s: torch.randn(*s, dtype=torch.bfloat16) * 0.8)(D)),
        }
    _B_in = _B_setup()

    return {
        "A_u": _A_in["u"],
        "A_A_re": _A_in["A_re"],
        "A_A_im": _A_in["A_im"],
        "A_B_re": _A_in["B_re"],
        "A_B_im": _A_in["B_im"],
        "A_C_re": _A_in["C_re"],
        "A_C_im": _A_in["C_im"],
        "A_log_dt": _A_in["log_dt"],
        "A_Dskip": _A_in["Dskip"],
        "B_x": _B_in["x"],
        "B_w1": _B_in["w1"],
        "B_b1": _B_in["b1"],
        "B_w2": _B_in["w2"],
        "B_b2": _B_in["b2"],
    }

def reference(A_u, A_A_re, A_A_im, A_B_re, A_B_im, A_C_re, A_C_im, A_log_dt, A_Dskip, B_x, B_w1, B_b1, B_w2, B_b2):
    def _A_ref(u, A_re, A_im, B_re, B_im, C_re, C_im, log_dt, Dskip):
        Bsz, L, D = u.shape
        dt = torch.exp(log_dt)[:, None]
        A = A_re + 1j * A_im
        Bc = B_re + 1j * B_im
        Cc = C_re + 1j * C_im
        logdA = dt * A
        dB = dt * Bc
        l = (lambda x, dt: x.to(dt))(torch.arange(L), A_re.dtype)
        P = torch.exp(logdA[:, :, None] * l[None, None, :])
        K = torch.einsum("dn,dnl,dn->dl", Cc, P, dB).real
        L2 = 2 * L
        Kp = _pad(K, ((0, 0), (0, L)))
        up = (lambda x, *d: x.permute(*d))(u, 0, 2, 1)
        up = _pad(up, ((0, 0), (0, 0), (0, L)))
        Kf = (lambda x, axes=(-2,-1): torch.fft.rfft2(x.float(), dim=axes))(Kp[:, None, :], axes=(-2, -1))
        Uf = (lambda x, axes=(-2,-1): torch.fft.rfft2(x.float(), dim=axes))(up[:, :, None, :], axes=(-2, -1))
        Yf = Uf * Kf[None, :, :, :]
        y = (lambda x, s, axes=(-2,-1): torch.fft.irfft2(x, s=s, dim=axes).to(torch.bfloat16))(Yf, (1, L2), axes=(-2, -1))[:, :, 0, :L]
        y = (lambda x, *d: x.permute(*d))(y, 0, 2, 1) + u * Dskip[None, None, :]
        return y

    def _B_ref(x, w1, b1, w2, b2):
        h = torch.einsum("bsd,df->bsf", x, w1) + b1
        zero = torch.zeros_like(h)
        r = torch.where(h > zero, h, zero)
        h = r * r
        out = torch.einsum("bsf,fd->bsd", h, w2) + b2
        return out

    x = A_u
    xn = _layernorm(x, axis=-1)
    return x + _A_ref(xn, A_A_re, A_A_im, A_B_re, A_B_im, A_C_re, A_C_im, A_log_dt, A_Dskip) + _B_ref(xn, B_w1, B_b1, B_w2, B_b2)
```

```python
import re

REG_RE = re.compile(r'\b([vas])\[(\d+):(\d+)\]|\b([vas])(\d+)\b|\b(vcc|exec|m0|scc)\b')

def regs_of(op):
    out = []
    for m in REG_RE.finditer(op):
        if m.group(1): out += [(m.group(1), i) for i in range(int(m.group(2)), int(m.group(3)) + 1)]
        elif m.group(4): out.append((m.group(4), int(m.group(5))))
        else: out.append((m.group(6), 0))
    return out

TRANS = ('v_exp_f32', 'v_log_f32', 'v_rcp_f32', 'v_rsq_f32', 'v_sqrt_f32', 'v_sin_f32', 'v_cos_f32')

class I:
    __slots__ = ('text', 'op', 'reads', 'writes', 'kind', 'tok', 'extra', 'passes', 'srcc', 'wide', 'dpp', 'cmt')
    def __init__(self, text, tok=None, extra=False):
        self.text = text; self.tok = tok; self.extra = extra
        self.passes = 0; self.srcc = []; self.wide = False; self.dpp = False
        t = text.split(';')[0].strip()
        self.op = t.split()[0] if t else ''
        rest = t[len(self.op):].strip()
        rest = re.sub(r'L_[A-Za-z0-9_]+', 'LBL', rest)
        ops = [o.strip() for o in split_ops(rest)]
        op = self.op
        R = lambda idxs: [r for i in idxs if i < len(ops) for r in regs_of(ops[i].split()[0] if ops[i] else '')]
        allidx = list(range(len(ops)))
        self.reads, self.writes = [], []
        if op.endswith(':') or op.startswith('.') or op == '':
            self.kind = 'label' if op.endswith(':') else 'dir'
        elif op.startswith('v_mfma'):
            self.kind = 'mfma'
            self.writes = R([0]); self.reads = R([1, 2, 3]); self.srcc = R([3])
            self.passes = 8 if '32x32' in op else 4
        elif op.startswith('ds_'):
            self.kind = 'ds'
            if op.startswith('ds_read') or op.startswith('ds_bpermute') or op.startswith('ds_swizzle'):
                self.writes = R([0]); self.reads = R(allidx[1:])
            else:
                self.reads = R(allidx)
        elif op.startswith('buffer_') or op.startswith('global_'):
            self.kind = 'vmem'
            lds = re.search(r'\blds\b', rest) is not None or '_lds_' in op
            if 'load' in op and not lds:
                self.writes = R([0]); self.reads = R(allidx[1:])
            elif 'atomic' in op and re.search(r'\bsc0\b', rest):
                self.writes = R([0]); self.reads = R(allidx)
            else:
                self.reads = R(allidx)
                if lds: self.reads.append(('m0', 0))
                if re.search(r'store_dwordx[34]', op): self.wide = True
        elif op.startswith('s_'):
            if op in ('s_waitcnt', 's_nop', 's_barrier', 's_endpgm', 's_branch', 's_setprio', 's_sleep') or op.startswith('s_cbranch'):
                self.kind = 'sctl'
                if op in ('s_cbranch_vccz', 's_cbranch_vccnz'): self.reads = [('vcc', 0)]
                if op in ('s_cbranch_execz', 's_cbranch_execnz'): self.reads = [('exec', 0)]
            elif op.startswith('s_load') or op.startswith('s_memtime') or op.startswith('s_memrealtime'):
                self.kind = 'smem'
                self.writes = R([0]); self.reads = R(allidx[1:])
            elif op.startswith('s_cmp'):
                self.kind = 'salu'; self.reads = R(allidx)
            else:
                self.kind = 'salu'; self.writes = R([0]); self.reads = R(allidx[1:])
                if 'saveexec' in op: self.writes.append(('exec', 0)); self.reads.append(('exec', 0))
        elif op.startswith('v_'):
            self.kind = 'valu'
            self.dpp = '_dpp' in op or 'row_' in rest or 'quad_perm' in rest or 'wave_sh' in rest
            if op.startswith('v_cmp'):
                self.writes = R([0]); self.reads = R(allidx[1:])
            elif op.startswith('v_permlane') and 'swap' in op:
                self.writes = R([0, 1]); self.reads = R([0, 1])
            elif op.startswith('v_add_co') or op.startswith('v_sub_co') or op.startswith('v_addc_co') or op.startswith('v_subb_co'):
                self.writes = R([0, 1]); self.reads = R(allidx[2:])
            else:
                self.writes = R([0]); self.reads = R(allidx[1:])
                if op.startswith('v_fmac') or op.startswith('v_dot2c') or op.startswith('v_writelane') or self.dpp:
                    self.reads += R([0])
                if op.startswith('v_cndmask') and len(ops) == 3: self.reads.append(('vcc', 0))
        else:
            raise ValueError('unknown instruction: ' + text)

def split_ops(s):
    out, depth, cur = [], 0, ''
    for ch in s:
        if ch in '[(': depth += 1
        if ch in '])': depth -= 1
        if ch == ',' and depth == 0: out.append(cur); cur = ''
        else: cur += ch
    if cur.strip(): out.append(cur)
    return out

class Prog:
    def __init__(self):
        self.ins = []
        self.ntok = 0
    def __call__(self, text, tok=None, extra=False):
        last = None
        for line in text.strip('\n').split('\n'):
            line = line.strip()
            if not line or line.startswith(';'): continue
            last = I(line, tok, extra); self.ins.append(last)
        return last
    def tok(self):
        self.ntok += 1; return self.ntok
    def vm(self, text, extra=False):
        t = self.tok(); self(text, tok=t, extra=extra); return t
    def wait_vm(self, *toks):
        i = I('s_nop 0'); i.kind = 'waitvm'; i.tok = [t for t in toks if t is not None]; self.ins.append(i)
    def ds(self, text):
        t = self.tok(); self(text, tok=t); return t
    def wait_ds(self, *toks):
        i = I('s_nop 0'); i.kind = 'waitds'; i.tok = list(toks); self.ins.append(i)
    def ifelse(self, sreg, pa, pb, la, lb):
        self.wait_lgkm0()
        for q in (pa, pb): q.wait_lgkm0()
        ta = '\n'.join('    ' + l for l in finalize(pa.ins)); tb = '\n'.join('    ' + l for l in finalize(pb.ins))
        i = I('s_nop 0'); i.kind = 'raw'
        i.text = f'    s_nop 7\n    s_nop 4\n    s_cmp_eq_u32 s{sreg}, 0\n    s_cbranch_scc0 {la}\n{ta}\n    s_branch {lb}\n{la}:\n{tb}\n{lb}:\n    s_nop 1'
        self.ins.append(i)
    def wait_lgkm0(self):
        i = I('s_nop 0'); i.kind = 'waitlgkm'; self.ins.append(i)
    def barrier(self):
        self.wait_lgkm0(); self('s_barrier')
    def raw(self, text):
        i = I('s_nop 0'); i.kind = 'raw'; i.text = text; self.ins.append(i)
    def extend(self, other): self.ins += other.ins

def interleave(main, side, start=0, ratio=None, anchors=None):
    out = []; n = len(main) - start
    k = 0
    for idx, ins in enumerate(main):
        out.append(ins)
        if idx >= start:
            want = (idx - start + 1) * len(side) // max(n, 1)
            while k < want: out.append(side[k]); k += 1
    out += side[k:]
    return out

def finalize(ins, verbose=False):
    out = []
    vmq = []
    lgq = []
    smem_pending = set()
    hist = []
    stats = {'nop': 0, 'wait': 0}
    serial = []; cnt = [0]; branch_marks = {}
    def emit(text, insn=None, states=1):
        out.append(text); hist.append((insn, states)); cnt[0] += 1; serial.append(cnt[0])
        if len(hist) > 60: del hist[0]; del serial[0]
    def wait(vm=None, lg=None):
        parts = []
        if vm is not None: parts.append(f'vmcnt({min(vm, 63)})')
        if lg is not None: parts.append(f'lgkmcnt({min(lg, 15)})')
        if parts:
            emit('s_waitcnt ' + ' '.join(parts)); stats['wait'] += 1
    def vm_need(pred):
        idx = -1
        for k, e in enumerate(vmq):
            if pred(e): idx = k
        if idx < 0: return None
        n = sum(1 for e in vmq[idx + 1:] if not e['extra'])
        n = min(n, 63)
        del vmq[:idx + 1]
        return n
    def lg_need(regs, toks=None):
        idx = -1
        for k, e in enumerate(lgq):
            if (e[0] & regs) or (toks and e[1] in toks): idx = k
        if idx < 0: return None
        n = len(lgq) - idx - 1
        if n > 15:
            n = 15
            del lgq[:len(lgq) - 15]
        else: del lgq[:idx + 1]
        return n
    def dist_need(i):
        need = 0; d = 0
        rd, wr = set(i.reads), set(i.writes)
        vr = {r for r in rd if r[0] in 'va'}; vw = {r for r in wr if r[0] in 'va'}
        sr = {r for r in rd if r[0] == 's' or r[0] == 'vcc'}
        for p, st in reversed(hist):
            if p is not None:
                pw, pr = set(p.writes), set(p.reads)
                req = 0
                if p.kind == 'valu':
                    pvw = {r for r in pw if r[0] in 'va'}; psw = {r for r in pw if r[0] == 's' or r[0] == 'vcc'}
                    if i.kind == 'mfma' and pvw & vr: req = max(req, 2)
                    if i.kind == 'valu':
                        if (i.dpp or i.op.startswith('v_permlane')) and pvw & vr: req = max(req, 2)
                        if i.op.startswith('v_readfirstlane') or i.op.startswith('v_readlane'):
                            if pvw & vr: req = max(req, 1)
                        if psw & sr: req = max(req, 4 if ('lane' in i.op and not i.op.startswith('v_readfirst')) else 2)
                        if p.op.startswith(TRANS) and pvw & vr: req = max(req, 1)
                    if i.kind == 'vmem' and psw & sr: req = max(req, 5)
                    if i.kind in ('salu', 'sctl', 'smem') and psw & (sr | {r for r in rd if r[0] == 'vcc'}): req = max(req, 2)
                if p.kind == 'mfma':
                    big = p.passes == 8
                    if i.kind == 'mfma':
                        ab = set(i.reads) - set(i.srcc)
                        if pw & ab: req = max(req, 12 if big else 8)
                        c = set(i.srcc)
                        if pw & c and not (pw == c and p.passes == i.passes): req = max(req, 10 if big else 6)
                        if pw & set(i.writes) and not (pw == set(i.writes) and p.passes == i.passes and c == pw): req = max(req, 12 if big else 8)
                    elif i.kind in ('valu', 'ds', 'vmem'):
                        if pw & (vr | vw): req = max(req, 12 if big else 8)
                        if i.kind == 'valu' and set(p.srcc) & vw: req = max(req, 7 if big else 3)
                if p.kind == 'salu' and ('m0', 0) in pw and ('m0', 0) in rd and i.kind in ('vmem', 'ds'): req = max(req, 1)
                if p.kind == 'vmem' and p.wide and i.kind == 'valu' and {r for r in pr if r[0] in 'va'} & vw: req = max(req, 2)
                need = max(need, req - d)
            d += st
            if d >= 13: break
        return need
    for i in ins:
        if i.kind == 'raw':
            out.append(i.text); hist.clear(); serial.clear(); continue
        if i.kind == 'waitvm':
            toks = set(i.tok)
            n = vm_need(lambda e: e['tok'] in toks)
            if n is not None: wait(vm=n)
            continue
        if i.kind == 'waitds':
            n = lg_need(set(), set(i.tok))
            if n is not None:
                if smem_pending: n = 0; lgq.clear(); smem_pending.clear()
                wait(lg=n)
            continue
        if i.kind == 'waitlgkm':
            if lgq or smem_pending:
                lgq.clear(); smem_pending.clear(); wait(lg=0)
            continue
        if i.kind in ('label', 'dir'):
            if i.kind == 'label':
                name = i.text.strip()[:-1]
                if name in branch_marks:
                    k = branch_marks.pop(name)
                    for j in range(len(hist)):
                        if serial[j] > k: hist[j] = (hist[j][0], 0)
            out.append(i.text); continue
        touched = set(i.reads) | set(i.writes)
        vmn = vm_need(lambda e: e['regs'] & touched)
        lgn = None
        if smem_pending & touched:
            lgq.clear(); smem_pending.clear(); lgn = 0
        else:
            lgn = lg_need(touched)
            if lgn is not None and smem_pending: lgn = 0; lgq.clear(); smem_pending.clear()
        if vmn is not None or lgn is not None: wait(vmn, lgn)
        n = dist_need(i)
        while n > 0:
            k = min(n, 16); emit(f's_nop {k-1}', None, k); n -= k; stats['nop'] += 1
        if i.op == 's_nop':
            emit(i.text, None, int(i.text.split()[1]) + 1); continue
        emit(i.text, i)
        if i.op.startswith('s_cbranch') or i.op == 's_branch':
            branch_marks[i.text.split()[1]] = cnt[0]
        if i.kind == 'vmem':
            vmq.append({'tok': i.tok, 'regs': set(i.writes), 'extra': i.extra})
        elif i.kind == 'ds':
            lgq.append((set(i.writes), i.tok))
        elif i.kind == 'smem':
            smem_pending |= set(i.writes)
    if verbose: print('finalize:', stats, 'lines', len(out))
    return out
```

```python
import sys
from ir import Prog, finalize, interleave

KNAME = 'parallel_sum__ssm_conv_s4__dense_activation_squared_relu__prompt_kernel'

WS_F1, WS_F2, WS_F3 = 0x0, 0x1000, 0x3000
WS_XNT = 0x100000
WS_H = 0x400000
WS_YT = 0xA00000
WS_DBG = 0x1000000
WS_SIZE = 0x4000000

SLOT = 8192
L_X = 0
L_RINGA = 65536
L_E = 114688
E_WAVE = 8704
L_KR = 149504
KR_CH = 4608
L_STAT = 158720
L_B1 = 159232
L_CS = 160256
L_END = 163840
U_CS = 4160
U_CH = 4 * U_CS

SRD_X, SRD_W1, SRD_W2, SRD_WS, SRD_OUT, SRD_DBG = 8, 12, 16, 20, 24, 28
P_X, P_ARE, P_AIM, P_BRE, P_BIM, P_CRE, P_CIM, P_LDT, P_DSK, P_BX, P_W1, P_B1, P_W2, P_B2, P_OUT, P_DBG, P_WS = range(36, 70, 2)
S_W, S_R, S_C, S_WA, S_WB, S_NONCE, S_D, S_T0, S_NT = range(70, 79)
S_T = 80

def srd(n): return f's[{n}:{n+3}]'
def sp(n): return f's[{n}:{n+1}]'
def vr(n, k=1): return f'v{n}' if k == 1 else f'v[{n}:{n+k-1}]'
def ar(n, k=1): return f'a{n}' if k == 1 else f'a[{n}:{n+k-1}]'

V_TID, V_LANE = 0, 1

class Gen:
    def __init__(self, stop=None, profile=False, maxpoll=200000):
        self.p = Prog(); self.stop = stop; self.profile = profile; self.maxpoll = maxpoll
        self.weave = 4; self.profile_fine = False; self.nlab = 0; self.nstamp = 0; self.stamp_names = []
    def lab(self, s='L'):
        self.nlab += 1; return f'{s}_{self.nlab}'

    def mk_srd(self, n, ptr, size):
        self.p(f"""
        s_mov_b32 s{n}, s{ptr}
        s_mov_b32 s{n+1}, s{ptr+1}
        s_mov_b32 s{n+2}, {hex(size)}
        s_mov_b32 s{n+3}, 0x20000""")

    def stamp(self, name=''):
        if not self.profile: return
        k = self.nstamp; self.nstamp += 1
        self.stamp_names.append(name)
        self.p.raw(f"""    s_memrealtime s[92:93]
    s_memtime s[100:101]
    s_waitcnt lgkmcnt(0)
    v_writelane_b32 v251, s92, {k}
    v_writelane_b32 v250, s100, {k}""")
        self.p.wait_lgkm0()

    def stamp_store(self):
        if not self.profile: return
        self.p.raw(f"""    s_waitcnt vmcnt(0) lgkmcnt(0)
    s_lshl_b32 s94, s2, 2
    s_add_u32 s94, s94, s{S_W}
    s_lshl_b32 s94, s94, 9
    s_add_u32 s94, s94, {WS_DBG + 0x800000}
    v_lshlrev_b32 v249, 2, v{V_LANE}
    v_add_u32 v249, s94, v249
    buffer_store_dword v251, v249, {srd(SRD_WS)}, 0 offen
    buffer_store_dword v250, v249, {srd(SRD_WS)}, 0 offen offset:256""")

    def dump_lds(self, lds_off, nbytes, ws_off, per_wg):
        p = self.p
        p.barrier()
        p(f's_mul_i32 s{S_T}, s2, {per_wg}')
        p(f's_add_u32 s{S_T}, s{S_T}, {ws_off}')
        p(f'v_lshlrev_b32 v240, 4, v{V_TID}')
        for o in range(0, nbytes, 4096):
            p(f'v_add_u32 v241, {lds_off + o}, v240')
            p(f'ds_read_b128 v[244:247], v241')
            p(f'v_add_u32 v242, {o}, v240')
            p(f'v_cmp_gt_u32 vcc, {nbytes}, v242')
            p(f'v_cndmask_b32 v242, -1, v242, vcc')
            p(f'v_add_u32 v243, s{S_T}, v242')
            p(f'v_cndmask_b32 v243, -1, v243, vcc')
            p(f'buffer_store_dwordx4 v[244:247], v243, {srd(SRD_WS)}, 0 offen')

    def cmul(self, d, a, b, t):
        p = self.p
        p(f'v_pk_mul_f32 {vr(t,2)}, {vr(a,2)}, {vr(b,2)} op_sel:[0,0] op_sel_hi:[0,1]')
        p(f'v_pk_fma_f32 {vr(d,2)}, {vr(a,2)}, {vr(b,2)}, {vr(t,2)} op_sel:[1,1,0] op_sel_hi:[1,0,1] neg_lo:[1,0,0]')

    def prologue(self):
        p = self.p
        p(f"""
        s_cmp_ge_u32 s2, 256
        s_cbranch_scc1 L_exit
        s_load_dwordx16 s[36:51], s[0:1], 0
        s_load_dwordx16 s[52:67], s[0:1], 64
        s_load_dwordx2 s[68:69], s[0:1], 128
        s_getpc_b64 s[4:5]
        L_pc:
        v_and_b32 v{V_LANE}, 63, v{V_TID}
        v_lshrrev_b32 v2, 6, v{V_TID}
        v_lshlrev_b32 v3, 7, v{V_TID}
        v_readfirstlane_b32 s{S_W}, v2
        """)
        self.code_pf = []
        for k in range(self.code_rounds):
            p(f'v_add_u32 v{4+k}, {0x8000*k}, v3')
            p(f'v_min_u32 v{4+k}, L_code_end-L_pc-4, v{4+k}')
            p(f'global_load_dword v{244+k}, v{4+k}, {sp(4)}')
        p(f"""
        s_and_b32 s{S_T}, s2, 7
        s_lshr_b32 s{S_T+1}, s2, 3
        s_and_b32 s{S_T+1}, s{S_T+1}, 3
        s_lshl_b32 s{S_T+1}, s{S_T+1}, 3
        s_add_u32 s{S_R}, s{S_T}, s{S_T+1}
        s_lshr_b32 s{S_C}, s2, 5
        s_lshr_b32 s{S_WA}, s{S_W}, 1
        s_and_b32 s{S_WB}, s{S_W}, 1
        s_lshl_b32 s{S_T}, s{S_C}, 6
        s_lshl_b32 s{S_T+1}, s{S_R}, 1
        s_add_u32 s{S_T}, s{S_T}, s{S_T+1}
        s_add_u32 s{S_D}, s{S_T}, s{S_WA}
        s_mul_i32 s{S_T+2}, s{S_C}, 43
        s_add_u32 s{S_T+3}, s{S_T+2}, 2
        s_lshr_b32 s{S_T0}, s{S_T+3}, 3
        s_add_u32 s{S_T+3}, s{S_T+2}, 45
        s_lshr_b32 s{S_T+3}, s{S_T+3}, 3
        s_sub_u32 s{S_NT}, s{S_T+3}, s{S_T0}
        """)
        p.wait_lgkm0()
        self.mk_srd(SRD_X, P_X, 2048*512*2)
        self.mk_srd(SRD_W1, P_W1, 512*1376*2)
        self.mk_srd(SRD_W2, P_W2, 1376*512*2)
        self.mk_srd(SRD_WS, P_WS, WS_SIZE)
        self.mk_srd(SRD_OUT, P_OUT, 2048*512*2)
        self.mk_srd(SRD_DBG, P_DBG, 256)

    def kgen_loads(self):
        p = self.p
        p(f"""
        s_lshl_b32 s{S_T}, s{S_D}, 8
        s_lshl_b32 s{S_T+1}, s{S_WB}, 7
        s_add_u32 s{S_T}, s{S_T}, s{S_T+1}
        v_lshlrev_b32 v10, 1, v{V_LANE}
        v_add_u32 v10, s{S_T}, v10
        """)
        for k, ptr in enumerate((P_ARE, P_AIM, P_BRE, P_BIM, P_CRE, P_CIM)):
            p(f'global_load_ushort v{12+k}, v10, {sp(ptr)}')
        p(f"""
        s_and_b32 s{S_T}, s{S_D}, 0x1fe
        s_lshl_b32 s{S_T}, s{S_T}, 1
        s_load_dword s{S_T+4}, {sp(P_LDT)}, s{S_T}
        s_load_dword s{S_T+5}, {sp(P_DSK)}, s{S_T}
        """)

    def kgen(self):
        p = self.p
        self._k = True
        LOG2E = 0x3fb8aa3b; LOG2E_LO = 0x32a57060; LN2 = 0x3f317218; INV2PI = 0x3e22f983
        p(f"""
        s_lshl_b32 s{S_T+6}, s{S_WA}, 4
        s_lshr_b32 s{S_T+4}, s{S_T+4}, s{S_T+6}
        s_lshl_b32 s{S_T+4}, s{S_T+4}, 16
        s_lshr_b32 s{S_T+5}, s{S_T+5}, s{S_T+6}
        s_lshl_b32 s{S_T+5}, s{S_T+5}, 16
        v_mov_b32 v20, s{S_T+4}
        v_mul_f32 v21, {hex(LOG2E)}, v20
        v_mov_b32 v22, {hex(LOG2E)}
        v_fma_f32 v23, v20, v22, -v21
        v_mov_b32 v22, {hex(LOG2E_LO)}
        v_fma_f32 v23, v20, v22, v23
        v_exp_f32 v21, v21
        v_mul_f32 v23, {hex(LN2)}, v23
        v_fma_f32 v21, v21, v23, v21
        v_cvt_pk_bf16_f32 v21, v21, v21
        v_lshlrev_b32 v20, 16, v21
        """)
        DT = 20
        for k in range(6): p(f'v_lshlrev_b32 v{12+k}, 16, v{12+k}')
        Z, DB, CC, W, T0, T1 = 22, 24, 16, 26, 28, 30
        p(f'v_mul_f32 v{Z}, v{DT}, v12')
        p(f'v_mul_f32 v{Z+1}, v{DT}, v13')
        p(f'v_mul_f32 v{DB}, v{DT}, v14')
        p(f'v_mul_f32 v{DB+1}, v{DT}, v15')
        self.cmul(W, CC, DB, T0)
        P = {k: 30 + 2*k for k in range(1, 9)}
        p(f"""
        v_mul_f32 v{T0}, {hex(LOG2E)}, v{Z}
        v_mul_f32 v{T0+1}, {hex(INV2PI)}, v{Z+1}
        v_exp_f32 v{T0}, v{T0}
        v_sin_f32 v{T1+1}, v{T0+1}
        v_cos_f32 v{T1}, v{T0+1}
        s_nop 0
        v_mul_f32 v{P[1]}, v{T0}, v{T1}
        v_mul_f32 v{P[1]+1}, v{T0}, v{T1+1}
        """)
        self.stamp('k_p1')
        TA, TB, TC, TD = 48, 50, 52, 54
        self.cmul(P[2], P[1], P[1], TA)
        self.cmul(P[3], P[2], P[1], TB)
        self.cmul(P[4], P[2], P[2], TC)
        self.cmul(P[5], P[4], P[1], TA)
        self.cmul(P[6], P[4], P[2], TB)
        self.cmul(P[7], P[4], P[3], TD)
        self.cmul(P[8], P[4], P[4], TC)
        Q = {16: 56, 32: 58, 64: 60, 128: 62, 256: 64, 512: 66, 1024: 68, 768: 70, 1280: 72, 1536: 74, 1792: 76}
        self.cmul(Q[16], P[8], P[8], TA)
        self.cmul(Q[32], Q[16], Q[16], TB)
        C = [80, 82, 84, 86]
        p(f'v_mov_b32 v{C[0]}, v{W}'); p(f'v_mov_b32 v{C[0]+1}, v{W+1}')
        self.cmul(C[1], W, P[8], TC)
        self.cmul(Q[64], Q[32], Q[32], TA)
        self.cmul(C[2], W, Q[16], TD)
        self.cmul(Q[128], Q[64], Q[64], TB)
        self.cmul(C[3], C[1], Q[16], TC)
        self.cmul(Q[256], Q[128], Q[128], TA)
        self.cmul(Q[512], Q[256], Q[256], TB)
        self.cmul(Q[1024], Q[512], Q[512], TA)
        self.cmul(Q[768], Q[512], Q[256], TB)
        self.cmul(Q[1280], Q[1024], Q[256], TC)
        self.cmul(Q[1536], Q[1024], Q[512], TD)
        self.cmul(Q[1792], Q[1536], Q[256], TA)
        VE = 11
        p(f's_mul_i32 s{S_T+6}, s{S_W}, {E_WAVE}')
        p(f's_add_u32 s{S_T+6}, s{S_T+6}, {L_E}')
        p(f'v_lshlrev_b32 v{VE}, 2, v{V_LANE}')
        p(f'v_add_u32 v{VE}, s{S_T+6}, v{VE}')
        pk = [88, 89, 90, 91]; R = [92, 94, 96, 98]; TT = [100, 102, 104, 106]
        nw = [0]
        def put(slot, reg, neg=False):
            d = pk[nw[0] % 4]; nw[0] += 1
            p(f'v_cvt_pk_bf16_f32 v{d}, v{reg}, {"-" if neg else ""}v{reg+1}')
            p(f'ds_write_b32 v{VE}, v{d} offset:{slot*272}')
        p(f'v_mov_b32 v{pk[3]}, 0x3f80')
        p(f'ds_write_b32 v{VE}, v{pk[3]} offset:0')
        for k in range(1, 8): put(k, P[k])
        prods = [(8, Q[256], None), (9, Q[256], P[2]), (10, Q[256], P[4]),
                 (12, Q[256], P[4]), (13, Q[256], P[6]), (14, Q[256], P[8]),
                 (16, Q[512], None), (17, Q[512], P[4]), (18, Q[512], P[8]),
                 (20, Q[768], None), (21, Q[768], P[4]), (22, Q[768], P[8]),
                 (24, Q[1024], None), (25, Q[1024], P[8]), (26, Q[1280], None), (27, Q[1280], P[8]),
                 (28, Q[1536], None), (29, Q[1536], P[8]), (30, Q[1792], None), (31, Q[1792], P[8])]
        j = 0
        for slot, a, b in prods:
            if b is None: put(slot, a)
            else:
                self.cmul(R[j % 4], a, b, TT[j % 4]); put(slot, R[j % 4]); j += 1
        self.stamp('k_rows')
        VR = 108; RA = 112; CB = 144; ACC = 176
        p(f'v_and_b32 v{VR}, 31, v{V_LANE}')
        p(f'v_mul_u32_u24 v{VR}, 272, v{VR}')
        p(f'v_lshrrev_b32 v109, 5, v{V_LANE}')
        p(f'v_lshl_add_u32 v{VR}, v109, 4, v{VR}')
        p(f'v_add_u32 v{VR}, s{S_T+6}, v{VR}')
        for ks in range(8): p(f'ds_read_b128 {vr(RA+4*ks,4)}, v{VR} offset:{32*ks}')
        for i in range(32):
            c = C[i % 4]
            put(i, c, neg=True)
            if i + 4 < 32:
                self.cmul(R[i % 4], c, Q[32], TT[i % 4])
                C[i % 4], R[i % 4] = R[i % 4], c
        for ks in range(8): p(f'ds_read_b128 {vr(CB+4*ks,4)}, v{VR} offset:{32*ks}')
        for ks in range(8):
            p(f'v_mfma_f32_32x32x16_bf16 {vr(ACC,16)}, {vr(RA+4*ks,4)}, {vr(CB+4*ks,4)}, {"0" if ks == 0 else vr(ACC,16)}')
        self.stamp('k_mfma')
        VX = 110; OTH = 192; MY = 200
        p(f'v_lshlrev_b32 v{VX}, 4, v{V_LANE}')
        p(f'v_add_u32 v{VX}, s{S_T+6}, v{VX}')
        p(f's_cmp_eq_u32 s{S_WB}, 0')
        p(f's_cselect_b64 vcc, -1, 0')
        for k in range(8):
            p(f'v_cndmask_b32 v{OTH+k}, v{ACC+k}, v{ACC+8+k}, vcc')
            p(f'v_cndmask_b32 v{MY+k}, v{ACC+8+k}, v{ACC+k}, vcc')
        p(f'ds_write_b128 v{VX}, {vr(OTH,4)} offset:0')
        p(f'ds_write_b128 v{VX}, {vr(OTH+4,4)} offset:1024')
        p.barrier()
        p(f's_xor_b32 s{S_T+7}, s{S_W}, 1')
        p(f's_mul_i32 s{S_T+7}, s{S_T+7}, {E_WAVE}')
        p(f's_add_u32 s{S_T+7}, s{S_T+7}, {L_E}')
        p(f'v_lshlrev_b32 v{VX}, 4, v{V_LANE}')
        p(f'v_add_u32 v{VX}, s{S_T+7}, v{VX}')
        p(f'ds_read_b128 {vr(OTH,4)}, v{VX} offset:0')
        p(f'ds_read_b128 {vr(OTH+4,4)}, v{VX} offset:1024')
        for k in range(8): p(f'v_add_f32 v{MY+k}, v{MY+k}, v{OTH+k}')
        col, hi, VK = 208, 209, 210
        p(f'v_and_b32 v{col}, 31, v{V_LANE}')
        p(f'v_lshrrev_b32 v{hi}, 5, v{V_LANE}')
        p(f's_mul_i32 s{S_T+8}, s{S_WA}, {KR_CH}')
        p(f's_add_u32 s{S_T+8}, s{S_T+8}, {L_KR}')
        La, Lb = self.lab('kx'), self.lab('kx')
        K0 = 212
        p(f's_cmp_eq_u32 s{S_WB}, 0')
        p(f's_cselect_b32 s{S_T+5}, s{S_T+5}, 0')
        p(f'v_mov_b32 v{K0}, s{S_T+5}')
        p(f'v_cmp_eq_u32 vcc, 0, v{V_LANE}')
        p(f'v_cndmask_b32 v{K0}, 0, v{K0}, vcc')
        p(f'v_add_f32 v{MY}, v{MY}, v{K0}')
        p(f's_cmp_eq_u32 s{S_WB}, 0')
        p(f's_cbranch_scc0 {La}')
        p(f'v_lshlrev_b32 v{VK}, 4, v{col}')
        p(f'v_lshl_add_u32 v{VK}, v{hi}, 3, v{VK}')
        p(f'v_sub_u32 v{VK}, s{S_T+8}, v{VK}')
        p(f'v_cvt_pk_bf16_f32 v{K0}, v{MY+3}, v{MY+2}')
        p(f'v_cvt_pk_bf16_f32 v{K0+1}, v{MY+1}, v{MY}')
        p(f'v_cvt_pk_bf16_f32 v{K0+2}, v{MY+6}, v{MY+5}')
        p(f'v_cvt_pk_bf16_f32 v{K0+3}, v{MY+4}, v{MY+4}')
        p(f'ds_write_b64 v{VK}, {vr(K0,2)} offset:{2*2044}')
        p(f'ds_write_b64 v{VK}, {vr(K0+2,2)} offset:{2*(2044-256)}')
        p(f'v_mov_b32 v{K0+4}, 0'); p(f'v_mov_b32 v{K0+5}, 0'); p(f'v_mov_b32 v{K0+6}, 0'); p(f'v_mov_b32 v{K0+7}, 0')
        p(f'v_lshlrev_b32 v{VK}, 4, v{col}')
        p(f'v_add_u32 v{VK}, s{S_T+8}, v{VK}')
        p(f'ds_write_b128 v{VK}, {vr(K0+4,4)} offset:4096')
        p(f's_branch {Lb}')
        p(f'{La}:')
        p(f'v_lshlrev_b32 v{VK}, 4, v{col}')
        p(f'v_lshl_add_u32 v{VK+1}, v{hi}, 9, v{VK}')
        p(f'v_sub_u32 v{VK+1}, s{S_T+8}, v{VK+1}')
        p(f'v_cvt_pk_bf16_f32 v{K0}, v{MY+2}, v{MY+2}')
        p(f'v_cvt_pk_bf16_f32 v{K0+1}, v{MY+1}, v{MY+1}')
        p(f'v_cvt_pk_bf16_f32 v{K0+2}, v{MY+1}, v{MY}')
        p(f'v_cvt_pk_bf16_f32 v{K0+3}, v{MY}, v{MY}')
        p(f'ds_write_b128 v{VK+1}, {vr(K0,4)} offset:{2*(2040-512)}')
        p(f'v_lshl_add_u32 v{VK+1}, v{hi}, 10, v{VK}')
        p(f'v_sub_u32 v{VK+1}, s{S_T+8}, v{VK+1}')
        p(f'v_and_b32 v{VK}, 1, v{col}')
        p(f'v_cmp_eq_u32 vcc, 1, v{VK}')
        for wdw, (a, b) in enumerate(((MY+4, MY+5), (MY+6, MY+7))):
            d = K0 + 4 + 4*wdw
            p(f'v_cndmask_b32 v{VK}, v{a}, v{b}, vcc')
            p(f'v_cvt_pk_bf16_f32 v{d}, v{b}, v{b}')
            p(f'v_cvt_pk_bf16_f32 v{d+1}, v{b}, v{VK}')
            p(f'v_cvt_pk_bf16_f32 v{d+2}, v{a}, v{a}')
            p(f'v_cvt_pk_bf16_f32 v{d+3}, v{a}, v{a}')
            p(f'ds_write_b128 v{VK+1}, {vr(d,4)} offset:{2*(2040-1024-256*wdw)}')
        p(f'{Lb}:')


    def w1_slot(self, ch):
        if ch < 6: return L_RINGA + ch * SLOT
        if ch < 10: return L_E + (ch - 6) * SLOT
        if ch < 18: return (ch - 10) * SLOT
        return L_RINGA + (ch - 18) * SLOT
    def w2_slot(self, j):
        if j < 14: return j * SLOT
        if j < 18: return L_E + (j - 14) * SLOT
        if j == 18: return L_KR
        return (j - 19) * SLOT

    def nonce_write(self):
        L = self.lab('nw')
        self.p.raw(f"""    s_cmp_lg_u32 s2, 0
    s_cbranch_scc1 {L}
    s_cmp_lg_u32 s{S_W}, 0
    s_cbranch_scc1 {L}
    s_memrealtime s[{S_T}:{S_T+1}]
    s_waitcnt lgkmcnt(0)
    s_or_b32 s{S_T}, s{S_T}, 1
    v_mov_b32 v8, s{S_T}
    v_mov_b32 v9, 0
    s_mov_b64 exec, 1
    buffer_store_dword v8, v9, {srd(SRD_DBG)}, 0 offen sc1
    s_mov_b64 exec, -1
    s_nop 1
{L}:""")

    def nonce_issue(self, v):
        self.p(f'v_mov_b32 v{v+1}, 0')
        self.p(f'buffer_load_dword v{v}, v{v+1}, {srd(SRD_DBG)}, 0 offen sc1')

    def nonce_check(self, v):
        p = self.p; L = self.lab('nc'); Ll = self.lab('nl')
        p(f'v_readfirstlane_b32 s{S_NONCE}, v{v}')
        p(f's_cmp_lg_u32 s{S_NONCE}, 0')
        p(f's_cbranch_scc1 {L}')
        p.raw(f"""    s_mov_b32 s{S_T}, 0
{Ll}:
    buffer_load_dword v{v}, v{v+1}, {srd(SRD_DBG)}, 0 offen sc1
    s_waitcnt vmcnt(0)
    v_readfirstlane_b32 s{S_NONCE}, v{v}
    s_add_u32 s{S_T}, s{S_T}, 1
    s_cmp_gt_u32 s{S_T}, {self.maxpoll}
    s_cbranch_scc1 {L}
    s_cmp_eq_u32 s{S_NONCE}, 0
    s_cbranch_scc1 {Ll}""")
        p(f'{L}:')

    def flag_store(self, base, line_s, word_s):
        L = self.lab('fs')
        self.p.raw(f"""    s_cmp_lg_u32 s{S_W}, 0
    s_cbranch_scc1 {L}
    s_lshl_b32 s{S_T}, s{line_s}, 7
    s_lshl_b32 s{S_T+1}, s{word_s}, 2
    s_add_u32 s{S_T}, s{S_T}, s{S_T+1}
    s_add_u32 s{S_T}, s{S_T}, {base}
    v_mov_b32 v248, s{S_NONCE}
    v_mov_b32 v249, s{S_T}
    s_mov_b64 exec, 1
    buffer_store_dword v248, v249, {srd(SRD_WS)}, 0 offen sc1
    s_mov_b64 exec, -1
    s_nop 1
{L}:""")

    def poll_issue(self, v, base, line_s, n):
        p = self.p
        p(f's_lshl_b32 s{S_T}, s{line_s}, 7')
        p(f's_add_u32 s{S_T}, s{S_T}, {base}')
        p(f'v_and_b32 v{v+1}, {n-1}, v{V_LANE}')
        p(f'v_lshl_add_u32 v{v+1}, v{v+1}, 2, s{S_T}')
        p(f'buffer_load_dword v{v}, v{v+1}, {srd(SRD_WS)}, 0 offen sc1')

    def poll_check(self, v):
        p = self.p; L = self.lab('pc'); Ll = self.lab('pl')
        p(f'v_cmp_eq_u32 vcc, s{S_NONCE}, v{v}')
        p(f's_cmp_eq_u64 vcc, exec')
        p(f's_cbranch_scc1 {L}')
        p.raw(f"""    s_mov_b32 s{S_T}, 0
{Ll}:
    buffer_load_dword v{v}, v{v+1}, {srd(SRD_WS)}, 0 offen sc1
    s_waitcnt vmcnt(0)
    v_cmp_eq_u32 vcc, s{S_NONCE}, v{v}
    s_add_u32 s{S_T}, s{S_T}, 1
    s_cmp_gt_u32 s{S_T}, {self.maxpoll}
    s_cbranch_scc1 {L}
    s_cmp_eq_u64 vcc, exec
    s_cbranch_scc0 {Ll}""")
        p(f'{L}:')

    V_W1A, V_W1B, V_W2A, V_W2B = 230, 231, 232, 233
    S_W1G, S_WL, S_W2G = 96, 97, 98

    def dma_setup(self):
        p = self.p
        p(f"""
        v_lshrrev_b32 v2, 2, v{V_LANE}
        v_and_b32 v3, 3, v{V_LANE}
        v_lshlrev_b32 v3, 4, v3
        v_mul_u32_u24 v{self.V_W1A}, 2752, v2
        v_add_u32 v{self.V_W1A}, v{self.V_W1A}, v3
        v_add_u32 v{self.V_W1B}, {16*2752 - 1024}, v{self.V_W1A}
        v_lshl_add_u32 v{self.V_W2A}, v2, 10, v3
        v_add_u32 v{self.V_W2B}, {16*1024 - 1024}, v{self.V_W2A}
        s_mul_i32 s{self.S_W1G}, s{S_WB}, {32*2752}
        s_add_u32 s{S_T}, s{S_T0}, s{S_WA}
        s_lshl_b32 s{S_T}, s{S_T}, 6
        s_add_u32 s{self.S_W1G}, s{self.S_W1G}, s{S_T}
        s_lshl_b32 s{self.S_WL}, s{S_WA}, 12
        s_lshl_b32 s{S_T}, s{S_WB}, 11
        s_add_u32 s{self.S_WL}, s{self.S_WL}, s{S_T}
        s_lshl_b32 s{self.S_W2G}, s{S_WB}, 15
        s_lshl_b32 s{S_T}, s{S_C}, 7
        s_add_u32 s{self.S_W2G}, s{self.S_W2G}, s{S_T}
        s_lshl_b32 s{S_T}, s{S_WA}, 6
        s_add_u32 s{self.S_W2G}, s{self.S_W2G}, s{S_T}
        """)

    def dma_w1(self, ch):
        p = self.p; i, kc = ch // 8, ch % 8
        p(f's_add_u32 m0, s{self.S_WL}, {self.w1_slot(ch)}')
        p(f's_add_u32 s{S_T+15}, s{self.S_W1G}, {kc*64*2752 + i*128}')
        t1 = p.vm(f'buffer_load_dwordx4 v{self.V_W1A}, {srd(SRD_W1)}, s{S_T+15} offen lds')
        t2 = p.vm(f'buffer_load_dwordx4 v{self.V_W1B}, {srd(SRD_W1)}, s{S_T+15} offen offset:1024 lds')
        self.tw1[ch] = (t1, t2)

    def dma_w2(self, j):
        p = self.p
        p(f's_add_u32 m0, s{self.S_WL}, {self.w2_slot(j)}')
        p(f's_add_u32 s{S_T+15}, s{self.S_W2G}, {j*64*1024}')
        t1 = p.vm(f'buffer_load_dwordx4 v{self.V_W2A}, {srd(SRD_W2)}, s{S_T+15} offen lds')
        t2 = p.vm(f'buffer_load_dwordx4 v{self.V_W2B}, {srd(SRD_W2)}, s{S_T+15} offen offset:1024 lds')
        self.tw2[j] = (t1, t2)

    def dma_x(self):
        p = self.p
        self.tx = []
        p(f'v_lshlrev_b32 v2, 4, v{V_LANE}')
        p(f's_lshl_b32 s{S_T}, s{S_W}, 14')
        p(f's_lshl_b32 s{S_T+1}, s{S_R}, 16')
        p(f's_add_u32 s{S_T+1}, s{S_T+1}, s{S_T}')
        for i in range(16):
            if i % 4 == 0:
                p(f's_add_u32 m0, s{S_T}, {L_X + i*1024}')
                p(f's_add_u32 s{S_T+2}, s{S_T+1}, {i*1024}')
            p(f'v_xor_b32 v{4 + i % 4}, {i << 4}, v2')
            self.tx.append(p.vm(f'buffer_load_dwordx4 v{4 + i % 4}, {srd(SRD_X)}, s{S_T+2} offen offset:{(i % 4)*1024} lds'))

    def l2_prefetch(self, srd_n, dst):
        p = self.p
        p(f's_lshr_b32 s{S_T}, s2, 3')
        p(f's_mul_i32 s{S_T}, s{S_T}, {344*128}')
        p(f'v_lshlrev_b32 v2, 7, v{V_TID}')
        p(f'v_add_u32 v2, s{S_T}, v2')
        p(f'buffer_load_dword v{dst}, v2, {srd(srd_n)}, 0 offen')
        p(f'v_add_u32 v3, {256*128}, v2')
        p(f'v_cmp_gt_u32 vcc, 88, v{V_TID}')
        p(f'v_cndmask_b32 v3, -1, v3, vcc')
        p(f'buffer_load_dword v{dst+1}, v3, {srd(srd_n)}, 0 offen')

    V_B2 = 234
    def small_loads(self):
        p = self.p
        self.mk_srd(S_T+8, P_B1, 1376*2)
        p(f's_lshl_b32 s{S_T}, s{S_T0}, 6')
        p(f'v_lshlrev_b32 v2, 1, v{V_TID}')
        p(f'v_add_u32 v2, s{S_T}, v2')
        p(f'buffer_load_ushort v228, v2, {srd(S_T+8)}, 0 offen')
        p(f's_lshl_b32 s{S_T}, s{S_C}, 7')
        p(f's_lshl_b32 s{S_T+1}, s{S_WB}, 6')
        p(f's_add_u32 s{S_T}, s{S_T}, s{S_T+1}')
        p(f'v_lshrrev_b32 v3, 5, v{V_LANE}')
        p(f'v_lshlrev_b32 v3, 3, v3')
        p(f'v_add_u32 v3, s{S_T}, v3')
        for g in range(4):
            p(f'global_load_dwordx2 {vr(self.V_B2+2*g,2)}, v3, {sp(P_B2)} offset:{16*g}')

    def small_tables(self):
        p = self.p
        p(f'v_lshlrev_b32 v2, 2, v{V_TID}')
        p(f'v_add_u32 v2, {L_B1}, v2')
        p(f'v_lshlrev_b32 v228, 16, v228')
        p(f'ds_write_b32 v2, v228')
        p(f'v_mov_b32 v3, 0')
        p(f'ds_write_b32 v2, v3 offset:{L_CS - L_B1}')

    V_RS, V_NM = 226, 227
    def stats(self):
        p = self.p
        FR, ONES, AG, AS = 64, 60, 128, 132
        p(f'v_and_b32 v2, 15, v{V_LANE}')
        p(f'v_lshrrev_b32 v3, 4, v{V_LANE}')
        p(f'v_xor_b32 v4, v2, v3')
        p(f'v_lshlrev_b32 v4, 4, v4')
        p(f's_lshl_b32 s{S_T}, s{S_W}, 14')
        p(f'v_lshl_add_u32 v4, v2, 10, v4')
        p(f'v_add_u32 v4, s{S_T}, v4')
        for k in range(4): p(f'v_mov_b32 v{ONES+k}, 0x3f803f80')
        for ks in range(16):
            p(f'v_xor_b32 v{6 + ks % 4}, {64*ks}, v4')
            p(f'ds_read_b128 {vr(FR+4*ks,4)}, v{6 + ks % 4}')
        for ks in range(16):
            f = vr(FR+4*ks, 4)
            p(f'v_mfma_f32_16x16x32_bf16 {vr(AG,4)}, {f}, {f}, {"0" if ks == 0 else vr(AG,4)}')
            p(f'v_mfma_f32_16x16x32_bf16 {vr(AS,4)}, {f}, {vr(ONES,4)}, {"0" if ks == 0 else vr(AS,4)}')
        p(f'v_and_b32 v5, 3, v2')
        p(f'v_mov_b32 v10, v{AG}'); p(f'v_mov_b32 v11, v{AS}')
        for k in range(1, 4):
            p(f'v_cmp_eq_u32 vcc, {k}, v5')
            p(f'v_cndmask_b32 v10, v10, v{AG+k}, vcc')
            p(f'v_cndmask_b32 v11, v11, v{AS+k}, vcc')
        p(f"""
        v_mul_f32 v11, 0x3b000000, v11
        v_mul_f32 v10, 0x3b000000, v10
        v_fma_f32 v10, -v11, v11, v10
        v_max_f32 v10, 0, v10
        v_cvt_pk_bf16_f32 v12, v11, v10
        v_and_b32 v10, 0xffff0000, v12
        v_lshlrev_b32 v11, 16, v12
        v_add_f32 v10, 0x3727c5ac, v10
        v_cvt_pk_bf16_f32 v10, v10, v10
        v_lshlrev_b32 v10, 16, v10
        v_sqrt_f32 v10, v10
        s_nop 0
        v_cvt_pk_bf16_f32 v10, v10, v10
        v_lshlrev_b32 v10, 16, v10
        v_rcp_f32 v10, v10
        s_nop 0
        v_mul_f32 v11, v11, v10
        v_sub_f32 v11, 0, v11
        s_lshl_b32 s{S_T}, s{S_W}, 6
        v_lshlrev_b32 v4, 2, v2
        v_add_u32 v4, s{S_T}, v4
        v_add_u32 v4, {L_STAT}, v4
        s_mov_b32 exec_lo, 0x00f0000f
        s_mov_b32 exec_hi, 0xf0000f00
        ds_write_b32 v4, v10
        ds_write_b32 v4, v11 offset:256
        s_mov_b64 exec, -1
        """)
        p.barrier()

    def xnt(self):
        p = self.p
        p(f"""
        v_lshrrev_b32 v2, 4, v{V_LANE}
        v_lshrrev_b32 v3, 2, v{V_LANE}
        v_and_b32 v3, 3, v3
        v_and_b32 v4, 3, v{V_LANE}
        v_lshl_add_u32 v5, v2, 3, v3
        s_lshl_b32 s{S_T}, s{S_C}, 3
        s_lshl_b32 s{S_T+1}, s{S_W}, 1
        s_add_u32 s{S_T}, s{S_T}, s{S_T+1}
        v_lshrrev_b32 v6, 1, v4
        v_add_u32 v6, s{S_T}, v6
        v_and_b32 v7, 15, v5
        v_xor_b32 v6, v6, v7
        v_lshlrev_b32 v6, 4, v6
        v_lshl_add_u32 v6, v5, 10, v6
        v_and_b32 v7, 1, v4
        v_lshl_add_u32 v6, v7, 3, v6
        v_add_u32 v7, 4096, v6
        v_xor_b32 v7, 64, v7
        """)
        D = 16
        for u in range(2):
            p(f'ds_read_b64_tr_b16 {vr(D+4*u,2)}, v6 offset:{32768*u}')
            p(f'ds_read_b64_tr_b16 {vr(D+4*u+2,2)}, v7 offset:{32768*u}')
        RS, NM = 24, 40
        p(f'v_lshlrev_b32 v8, 5, v2')
        p(f'v_add_u32 v8, {L_STAT}, v8')
        for u in range(2):
            for t in range(2):
                k = 2*u + t
                p(f'ds_read_b128 {vr(RS+4*k,4)}, v8 offset:{128*u + 16*t}')
                p(f'ds_read_b128 {vr(NM+4*k,4)}, v8 offset:{256 + 128*u + 16*t}')
        T = 56
        for k in range(8):
            q, hh = k // 2, k % 2
            t = T + 2*(k % 4)
            p(f'v_lshlrev_b32 v{t}, 16, v{D+k}')
            p(f'v_and_b32 v{t+1}, 0xffff0000, v{D+k}')
            p(f'v_pk_fma_f32 {vr(t,2)}, {vr(t,2)}, {vr(RS+4*q+2*hh,2)}, {vr(NM+4*q+2*hh,2)}')
            p(f'v_cvt_pk_bf16_f32 v{D+k}, v{t}, v{t+1}')
        p(f"""
        v_and_b32 v9, 15, v{V_LANE}
        s_lshl_b32 s{S_T}, s{S_C}, 6
        s_lshl_b32 s{S_T+1}, s{S_W}, 4
        s_add_u32 s{S_T}, s{S_T}, s{S_T+1}
        v_add_u32 v9, s{S_T}, v9
        v_lshlrev_b32 v9, 12, v9
        v_lshl_add_u32 v9, v2, 4, v9
        s_lshl_b32 s{S_T}, s{S_R}, 7
        s_add_u32 s{S_T}, s{S_T}, {WS_XNT}
        """)
        self.txnt = [p.vm(f'buffer_store_dwordx4 {vr(D+4*u,4)}, v9, {srd(SRD_WS)}, s{S_T} offen offset:{64*u} sc1') for u in range(2)]

    A_X, A_INIT = 0, 176
    def xfrags(self):
        p = self.p
        p(f"""
        v_and_b32 v2, 31, v{V_LANE}
        v_lshrrev_b32 v3, 5, v{V_LANE}
        v_and_b32 v4, 15, v2
        v_xor_b32 v4, v4, v3
        v_lshlrev_b32 v4, 4, v4
        s_lshl_b32 s{S_T}, s{S_WA}, 5
        v_add_u32 v5, s{S_T}, v2
        v_lshl_add_u32 v4, v5, 10, v4
        v_xor_b32 v4, s{S_T}, v4
        v_lshlrev_b32 v6, 2, v5
        v_add_u32 v6, {L_STAT}, v6
        """)
        p(f'ds_read_b32 v{self.V_RS}, v6')
        p(f'ds_read_b32 v{self.V_NM}, v6 offset:256')
        for q in range(32):
            p(f'v_xor_b32 v{8 + q % 4}, {32*q}, v4')
            p(f'ds_read_b128 {ar(self.A_X+4*q,4)}, v{8 + q % 4}')
        p(f"""
        s_lshl_b32 s{S_T}, s{S_C}, 3
        s_lshl_b32 s{S_T+1}, s{S_WB}, 2
        s_add_u32 s{S_T}, s{S_T}, s{S_T+1}
        v_and_b32 v4, 15, v2
        v_xor_b32 v4, s{S_T}, v4
        v_lshlrev_b32 v4, 4, v4
        v_lshl_add_u32 v4, v5, 10, v4
        v_lshl_add_u32 v4, v3, 3, v4
        """)
        for g in range(4):
            p(f'v_xor_b32 v{8+g}, {16*g}, v4')
            p(f'ds_read_b64 {vr(12+2*g,2)}, v{8+g}')
        for g in range(4):
            for hh in range(2):
                x, b = 12 + 2*g + hh, self.V_B2 + 2*g + hh
                p(f'v_lshlrev_b32 v20, 16, v{x}')
                p(f'v_lshlrev_b32 v21, 16, v{b}')
                p(f'v_and_b32 v22, 0xffff0000, v{x}')
                p(f'v_and_b32 v23, 0xffff0000, v{b}')
                p(f'v_add_f32 v20, v20, v21')
                p(f'v_add_f32 v22, v22, v23')
                p(f'v_accvgpr_write_b32 a{self.A_INIT + 4*g + 2*hh}, v20')
                p(f'v_accvgpr_write_b32 a{self.A_INIT + 4*g + 2*hh + 1}, v22')

    G1_ACC = (64, 80)
    G1_CS = (96, 100)
    G1_SEL = 104
    G1_WF = (108, 112, 116, 120)
    G1_VW = 124
    def gemm1_setup(self):
        p = self.p
        p(f"""
        v_lshrrev_b32 v2, 5, v{V_LANE}
        v_lshrrev_b32 v3, 2, v{V_LANE}
        v_and_b32 v3, 3, v3
        v_lshl_add_u32 v3, v2, 3, v3
        v_lshlrev_b32 v3, 6, v3
        v_lshrrev_b32 v4, 4, v{V_LANE}
        v_and_b32 v4, 1, v4
        v_lshl_add_u32 v3, v4, 5, v3
        v_and_b32 v4, 3, v{V_LANE}
        v_lshl_add_u32 v{self.V_TR}, v4, 3, v3
        s_lshl_b32 s{S_T}, s{S_WB}, 12
        s_lshl_b32 s{S_T+1}, s{S_WA}, 10
        s_add_u32 s{S_T+2}, s{S_T}, s{S_T+1}
        s_sub_u32 s{S_T+3}, s{S_T}, s{S_T+1}
        s_add_u32 s{S_T+3}, s{S_T+3}, 1024
        """)
        for b in range(3):
            p(f'v_add_u32 v{self.G1_VW+b}, s{S_T+2}, v{self.V_TR}')
            p(f'v_add_u32 v{self.G1_VW+3+b}, s{S_T+3}, v{self.V_TR}')
            if b:
                p(f'v_add_u32 v{self.G1_VW+b}, {65536*b}, v{self.G1_VW+b}')
                p(f'v_add_u32 v{self.G1_VW+3+b}, {65536*b}, v{self.G1_VW+3+b}')
        p(f"""
        v_lshrrev_b32 v2, 4, v{V_LANE}
        v_lshrrev_b32 v3, 3, v{V_LANE}
        v_xor_b32 v2, v2, v3
        v_and_b32 v2, 1, v2
        v_cmp_eq_u32 vcc, 0, v2
        v_mov_b32 v3, 0x3f803f80
        v_cndmask_b32 v{self.G1_SEL}, 0, v3, vcc
        v_mov_b32 v{self.G1_SEL+1}, v{self.G1_SEL}
        v_mov_b32 v{self.G1_SEL+2}, v{self.G1_SEL}
        v_mov_b32 v{self.G1_SEL+3}, v{self.G1_SEL}
        """)
    V_TR = 225

    def w_frag_reads(self, dst, basereg, addr):
        b, off = divmod(addr, 65536)
        if off + 256 > 65535: raise ValueError('offset')
        self.p(f'ds_read_b64_tr_b16 {vr(dst,2)}, v{basereg+b} offset:{off}')
        self.p(f'ds_read_b64_tr_b16 {vr(dst+2,2)}, v{basereg+b} offset:{off+256}')

    def gemm1_epilogue(self, i, acc):
        p = self.p
        B1, CS, PK = 132, 148, 164
        hi = 172
        p(f'v_lshrrev_b32 v{hi}, 5, v{V_LANE}')
        p(f'v_lshlrev_b32 v{hi}, 4, v{hi}')
        p(f's_lshl_b32 s{S_T+8}, s{S_WB}, 7')
        p(f's_add_u32 s{S_T+8}, s{S_T+8}, {L_B1 + 256*i}')
        p(f'v_add_u32 v{hi}, s{S_T+8}, v{hi}')
        for g in range(4):
            p(f'ds_read_b128 {vr(B1+4*g,4)}, v{hi} offset:{32*g}')
            p(f'ds_read_b128 {vr(CS+4*g,4)}, v{hi} offset:{32*g + L_CS - L_B1}')
        for k in range(16):
            p(f'v_fma_f32 v{B1+k}, v{CS+k}, v{self.V_NM}, v{B1+k}')
            p(f'v_fma_f32 v{B1+k}, v{acc+k}, v{self.V_RS}, v{B1+k}')
            p(f'v_max_f32 v{B1+k}, 0, v{B1+k}')
            p(f'v_mul_f32 v{B1+k}, v{B1+k}, v{B1+k}')
            if k % 2: p(f'v_cvt_pk_bf16_f32 v{PK + k//2}, v{B1+k-1}, v{B1+k}')
        for t in range(2):
            p(f'v_permlane32_swap_b32 v{PK+4*t}, v{PK+4*t+2}')
            p(f'v_permlane32_swap_b32 v{PK+4*t+1}, v{PK+4*t+3}')
        p(f's_lshl_b32 s{S_T+8}, s{S_R}, 1')
        p(f's_add_u32 s{S_T+8}, s{S_T+8}, s{S_WA}')
        p(f's_mul_i32 s{S_T+8}, s{S_T+8}, 86')
        p(f's_add_u32 s{S_T+9}, s{S_T0}, s{S_WB}')
        p(f's_add_u32 s{S_T+9}, s{S_T+9}, {2*i}')
        p(f's_lshl_b32 s{S_T+9}, s{S_T+9}, 1')
        p(f's_add_u32 s{S_T+8}, s{S_T+8}, s{S_T+9}')
        p(f's_lshl_b32 s{S_T+8}, s{S_T+8}, 10')
        p(f's_add_u32 s{S_T+8}, s{S_T+8}, {WS_H}')
        p(f'v_lshlrev_b32 v{hi+1}, 4, v{V_LANE}')
        L = None
        if i == 2:
            L = self.lab('hs')
            p(f's_add_u32 s{S_T+9}, s{S_WB}, 4')
            p(f's_cmp_ge_u32 s{S_T+9}, s{S_NT}')
            p(f's_cbranch_scc1 {L}')
        for t in range(2):
            self.th.append(p.vm(f'buffer_store_dwordx4 {vr(PK+4*t,4)}, v{hi+1}, {srd(SRD_WS)}, s{S_T+8} offen offset:{1024*t} sc1', extra=(i == 2)))
        if L: p(f'{L}:')

    def cs_publish(self, i):
        p = self.p; cs = self.G1_CS[i % 2]
        p(f'v_lshrrev_b32 v2, 4, v{V_LANE}')
        p(f'v_lshlrev_b32 v2, 4, v2')
        p(f'v_and_b32 v3, 8, v{V_LANE}')
        p(f'v_lshl_add_u32 v2, v3, 3, v2')
        p(f's_lshl_b32 s{S_T+12}, s{S_WB}, 7')
        p(f's_add_u32 s{S_T+12}, s{S_T+12}, {L_CS + 256*i}')
        p(f'v_add_u32 v2, s{S_T+12}, v2')
        p('s_mov_b32 exec_lo, 0x01010101')
        p('s_mov_b32 exec_hi, 0x01010101')
        toks = [p.ds(f'ds_add_f32 v2, v{cs+k} offset:{4*k}') for k in range(4)]
        p('s_mov_b64 exec, -1')
        return toks

    def sub(self, fn, *a):
        keep = self.p; self.p = Prog(); self.p.ntok = keep.ntok
        r = fn(*a); ins = self.p.ins; keep.ntok = self.p.ntok; self.p = keep
        return ins, r

    def gemm1(self, side_by_chunk=None):
        p = self.p
        self.th = []
        WF = self.G1_WF
        side_by_chunk = side_by_chunk or {}
        def reads(P):
            ch, ks = divmod(P, 4)
            base = self.G1_VW + (0 if ks % 2 == 0 else 3)
            self.w_frag_reads(WF[P % 4], base, self.w1_slot(ch) + (ks - ks % 2)*1024)
        def enter(ch):
            p.wait_vm(*self.tw1[ch])
            if ch == 2: p.wait_vm(*self.txnt)
            if ch in cs_wait: p.wait_ds(*cs_wait[ch])
            p('s_barrier')
            if ch == 2: self.flag_store(WS_F1, S_C, S_R)
        cs_wait = {}
        pending = []
        enter(0); reads(0); reads(1)
        for P in range(96):
            i, q = divmod(P, 32)
            ch, ks = divmod(P, 4)
            acc = self.G1_ACC[i % 2]; cs = self.G1_CS[i % 2]; wf = WF[P % 4]
            if P + 2 < 96:
                if (P + 2) % 4 == 0:
                    c2 = (P + 2) // 4
                    enter(c2)
                    if c2 >= 2 and c2 + 16 < 24: pending += self.sub(self.dma_w1, c2 + 16)[0]
                    pending += side_by_chunk.get(c2, [])
                    if c2 % 8 == 1 and c2 > 8:
                        pending += self.sub(self.gemm1_epilogue, c2 // 8 - 1, self.G1_ACC[(c2 // 8 - 1) % 2])[0]
                reads(P + 2)
            p(f'v_mfma_f32_32x32x16_bf16 {vr(acc,16)}, {vr(wf,4)}, {ar(self.A_X+4*q,4)}, {"0" if q == 0 else vr(acc,16)}')
            if ks % 2 == 0:
                p(f'v_mfma_f32_16x16x32_bf16 {vr(cs,4)}, {vr(wf,4)}, {vr(self.G1_SEL,4)}, {"0" if q == 0 else vr(cs,4)}')
            if q == 31:
                cs_wait[ch + 2] = self.cs_publish(i)
            left = 95 - P
            n = len(pending) if q == 31 else min(len(pending), self.weave)
            p.ins += pending[:n]; pending = pending[n:]
            if q == 31 and self.profile_fine: self.stamp(f'g1main{i}')
        p.wait_ds(*cs_wait[25])
        p('s_barrier')
        self.gemm1_epilogue(2, self.G1_ACC[0])

    CV_ACC = 16
    CV_K = (64, 128)
    CV_U = (96, 160)
    CV_VK, CV_VU = 10, 11
    CV_A = 192
    def conv_loads(self):
        p = self.p; A = self.CV_A
        p(f's_lshl_b32 s{S_T}, s{S_D}, 12')
        p(f's_lshl_b32 s{S_T+1}, s{S_WB}, 11')
        p(f's_add_u32 s{S_T}, s{S_T}, s{S_T+1}')
        p(f's_add_u32 s{S_T}, s{S_T}, {WS_XNT}')
        p(f'v_lshlrev_b32 v12, 4, v{V_LANE}')
        for sh in range(3):
            for u in range(2):
                p(f'buffer_load_dwordx4 {vr(A + 8*sh + 4*u, 4)}, v12, {srd(SRD_WS)}, s{S_T} offen offset:{4*sh + 1024*u} sc1')

    def conv_prep(self):
        p = self.p; A = self.CV_A; B = A + 8; C = A + 16; O1, O3 = 64, 72
        for k in range(8):
            p(f'v_alignbit_b32 v{O1+k}, v{B+k}, v{A+k}, 16')
            p(f'v_alignbit_b32 v{O3+k}, v{C+k}, v{B+k}, 16')
        p(f's_mul_i32 s{S_T}, s{S_WA}, {U_CH}')
        p(f's_add_u32 s{S_T}, s{S_T}, {L_E}')
        p(f's_lshl_b32 s{S_T+1}, s{S_WB}, 11')
        p(f's_add_u32 s{S_T+1}, s{S_T+1}, s{S_T}')
        p(f'v_lshlrev_b32 v12, 4, v{V_LANE}')
        p(f'v_add_u32 v12, s{S_T+1}, v12')
        for c, src in enumerate((A, O1, B, O3)):
            for u in range(2):
                p(f'ds_write_b128 v12, {vr(src + 4*u, 4)} offset:{c*U_CS + 32 + 1024*u}')
        h = Prog(); e = Prog()
        h(f"""
        v_readfirstlane_b32 s{S_T+2}, v{A}
        v_readfirstlane_b32 s{S_T+3}, v{O1}
        v_mov_b32 v80, 0
        v_mov_b32 v81, 0
        v_mov_b32 v82, 0
        v_mov_b32 v83, 0
        s_lshl_b32 s{S_T+4}, s{S_T+2}, 16
        v_mov_b32 v84, s{S_T+4}
        v_mov_b32 v85, s{S_T+2}
        v_mov_b32 v86, s{S_T+3}
        v_cmp_eq_u32 vcc, 7, v{V_LANE}
        v_cndmask_b32 v82, v82, v84, vcc
        v_cndmask_b32 v83, v83, v86, vcc
        v_cmp_eq_u32 vcc, 5, v{V_LANE}
        v_cndmask_b32 v83, v83, v85, vcc
        v_cmp_eq_u32 vcc, 3, v{V_LANE}
        v_cndmask_b32 v83, v83, v84, vcc
        v_lshrrev_b32 v87, 1, v{V_LANE}
        v_mul_u32_u24 v87, {U_CS}, v87
        v_and_b32 v88, 1, v{V_LANE}
        v_lshl_add_u32 v87, v88, 4, v87
        v_add_u32 v87, s{S_T}, v87
        s_mov_b64 exec, 0xff
        ds_write_b128 v87, v[80:83]
        s_mov_b64 exec, -1
        """)
        e('s_nop 0')
        p.ifelse(S_WB, h, e, self.lab('ch'), self.lab('ch'))
        p(f"""
        v_and_b32 v2, 15, v{V_LANE}
        v_lshrrev_b32 v3, 4, v{V_LANE}
        v_lshlrev_b32 v4, 5, v2
        v_sub_u32 v4, 480, v4
        v_lshl_add_u32 v4, v3, 4, v4
        s_mul_i32 s{S_T+2}, s{S_WA}, {KR_CH}
        s_lshl_b32 s{S_T+3}, s{S_WB}, 8
        s_add_u32 s{S_T+2}, s{S_T+2}, s{S_T+3}
        s_add_u32 s{S_T+2}, s{S_T+2}, {L_KR}
        v_add_u32 v{self.CV_VK}, s{S_T+2}, v4
        v_add_u32 v5, 1, v2
        v_and_b32 v6, 3, v5
        v_mul_u32_u24 v6, {U_CS}, v6
        v_lshrrev_b32 v5, 2, v5
        v_lshl_add_u32 v6, v5, 3, v6
        v_lshl_add_u32 v6, v3, 4, v6
        s_add_u32 s{S_T+3}, s{S_T+3}, s{S_T}
        v_add_u32 v{self.CV_VU}, s{S_T+3}, v6
        """)

    def conv_main(self, side):
        p = self.p
        def reads(i):
            out = []
            K, U = self.CV_K[i % 2], self.CV_U[i % 2]
            order = []
            for t in range(8): order += [('u', t), ('k', t)]
            for kind, t in order:
                if kind == 'k':
                    out.append(f'ds_read_b128 {vr(K + 4*t, 4)}, v{self.CV_VK} offset:{512*(7 - t) + 64*i}')
                else:
                    out.append(f'ds_read_b64 {vr(U + 4*t, 2)}, v{self.CV_VU} offset:{64*i + 512*t}')
                    out.append(f'ds_read_b64 {vr(U + 4*t + 2, 2)}, v{self.CV_VU} offset:{64*i + 512*t + 8}')
            return out
        for l in reads(0): p(l)
        side = list(side); nside = len(side); done = 0; tot = 4*36; cnt = 0
        for i in range(4):
            K, U = self.CV_K[i % 2], self.CV_U[i % 2]
            nxt = reads(i + 1) if i < 3 else []
            pairs = sorted([(m, e1) for m in range(8) for e1 in range(m + 1)], key=lambda x: (max(x[1], x[0] - x[1]), x[0]))
            for n, (m, e1) in enumerate(pairs):
                acc = self.CV_ACC + 4*m
                first = (i == 0 and (m, e1) == min(((mm, ee) for mm, ee in pairs if mm == m), key=pairs.index))
                p(f'v_mfma_f32_16x16x32_bf16 {vr(acc,4)}, {vr(U + 4*e1, 4)}, {vr(K + 4*(m - e1), 4)}, {"0" if first else vr(acc,4)}')
                if nxt and n >= 4: p(nxt.pop(0))
                cnt += 1
                want = nside * cnt // tot
                p.ins += side[done:want]; done = want
            for l in nxt: p(l)
        p.ins += side[done:]

    def conv_epilogue(self):
        p = self.p; ACC = self.CV_ACC; F = 64; R = 80
        p.barrier()
        p(f's_lshl_b32 s{S_T}, s{S_W}, 12')
        p(f's_add_u32 s{S_T}, s{S_T}, {L_E}')
        p(f'v_lshlrev_b32 v12, 4, v{V_LANE}')
        p(f'v_add_u32 v13, s{S_T}, v12')
        a, b = Prog(), Prog()
        for t in range(4):
            a(f'ds_write_b128 v13, {vr(ACC + 4*(2*t + 1), 4)} offset:{1024*t}')
            b(f'ds_write_b128 v13, {vr(ACC + 4*(2*t), 4)} offset:{1024*t}')
        p.ifelse(S_WB, a, b, self.lab('ce'), self.lab('ce'))
        p('s_barrier')
        p(f's_xor_b32 s{S_T}, s{S_W}, 1')
        p(f's_lshl_b32 s{S_T}, s{S_T}, 12')
        p(f's_add_u32 s{S_T}, s{S_T}, {L_E}')
        p(f'v_add_u32 v13, s{S_T}, v12')
        for t in range(4): p(f'ds_read_b128 {vr(R + 4*t, 4)}, v13 offset:{1024*t}')
        a, b = Prog(), Prog()
        p.wait_lgkm0()
        for t in range(4):
            for k in range(4):
                a(f'v_add_f32 v{F + 4*t + k}, v{ACC + 4*(2*t) + k}, v{R + 4*t + k}')
                b(f'v_add_f32 v{F + 4*t + k}, v{ACC + 4*(2*t + 1) + k}, v{R + 4*t + k}')
        p.ifelse(S_WB, a, b, self.lab('ce'), self.lab('ce'))
        for t in range(4):
            p(f'v_cvt_pk_bf16_f32 v{F + 2*t + 32}, v{F + 4*t}, v{F + 4*t + 1}')
            p(f'v_cvt_pk_bf16_f32 v{F + 2*t + 33}, v{F + 4*t + 2}, v{F + 4*t + 3}')
        p(f"""
        v_and_b32 v2, 15, v{V_LANE}
        v_lshrrev_b32 v3, 4, v{V_LANE}
        v_lshlrev_b32 v2, 5, v2
        v_lshl_add_u32 v2, v3, 3, v2
        s_lshl_b32 s{S_T}, s{S_D}, 12
        s_lshl_b32 s{S_T+1}, s{S_WB}, 9
        s_add_u32 s{S_T}, s{S_T}, s{S_T+1}
        s_add_u32 s{S_T}, s{S_T}, {WS_YT}
        """)
        self.ty = [p.vm(f'buffer_store_dwordx2 {vr(F + 2*t + 32, 2)}, v2, {srd(SRD_WS)}, s{S_T} offen offset:{1024*t} sc1') for t in range(4)]

    G2_ACC = (16, 32)
    G2_H = 128
    G2_NH = 16
    G2_W = (48, 56, 64, 72)
    G2_VW = 216
    S_HG = 99
    def gemm2_setup(self):
        p = self.p
        p(f's_lshl_b32 s{S_T}, s{S_WB}, 10')
        for b in range(3):
            p(f'v_add_u32 v{self.G2_VW+b}, s{S_T}, v{self.V_TR}')
            if b: p(f'v_add_u32 v{self.G2_VW+b}, {65536*b}, v{self.G2_VW+b}')
        p(f's_lshl_b32 s{self.S_HG}, s{S_R}, 1')
        p(f's_add_u32 s{self.S_HG}, s{self.S_HG}, s{S_WA}')
        p(f's_mul_i32 s{self.S_HG}, s{self.S_HG}, 86')
        p(f's_add_u32 s{self.S_HG}, s{self.S_HG}, s{S_WB}')
        p(f's_lshl_b32 s{self.S_HG}, s{self.S_HG}, 10')
        p(f's_add_u32 s{self.S_HG}, s{self.S_HG}, {WS_H}')
        p(f'v_lshlrev_b32 v219, 4, v{V_LANE}')

    def h_load(self, m):
        p = self.p
        d = self.G2_H + 4*(m % self.G2_NH)
        if m % 2 == 0: p(f's_add_u32 s{S_T+14}, s{self.S_HG}, {2048*m}')
        p(f'buffer_load_dwordx4 {vr(d,4)}, v219, {srd(SRD_WS)}, s{S_T+14} offen offset:{2048*(m % 2)} sc1')

    def y_load(self):
        p = self.p
        p(f"""
        v_lshrrev_b32 v2, 3, v{V_LANE}
        v_and_b32 v3, 7, v{V_LANE}
        v_lshlrev_b32 v2, 12, v2
        v_lshl_add_u32 v2, v3, 4, v2
        s_lshl_b32 s{S_T}, s{S_C}, 18
        s_lshl_b32 s{S_T+1}, s{S_R}, 7
        s_add_u32 s{S_T}, s{S_T}, s{S_T+1}
        s_lshl_b32 s{S_T+1}, s{S_W}, 16
        s_add_u32 s{S_T}, s{S_T}, s{S_T+1}
        s_add_u32 s{S_T}, s{S_T}, {WS_YT}
        s_lshl_b32 s{S_T+1}, s{S_W}, 11
        s_add_u32 m0, s{S_T+1}, {3*SLOT}
        v_add_u32 v3, {8*4096 - 1024}, v2
        """)
        t1 = p.vm(f'buffer_load_dwordx4 v2, {srd(SRD_WS)}, s{S_T} offen sc1 lds')
        t2 = p.vm(f'buffer_load_dwordx4 v3, {srd(SRD_WS)}, s{S_T} offen offset:1024 sc1 lds')
        self.tyl = (t1, t2)

    def gemm2(self):
        p = self.p; W = self.G2_W
        def reads(m):
            j = m >> 1
            for dt in range(2):
                self.w_frag_reads(W[m % 4] + 4*dt, self.G2_VW, self.w2_slot(j) + dt*4096 + (m & 1)*2048)
        PF = 12
        p.wait_vm(*[t for j in range(14) for t in self.tw2[j]])
        p('s_barrier')
        reads(0); reads(1)
        pending = []
        for j in range(14, 19): pending += self.sub(self.dma_w2, j)[0]
        for m in range(43):
            if m == 8:
                p('s_barrier')
                for j in range(19, 22): pending += self.sub(self.dma_w2, j)[0]
            if m == 9:
                p.wait_vm(*self.ty)
                p('s_barrier')
                self.flag_store(WS_F3, S_C, S_R)
            if m == 30: self.poll_issue(220, WS_F3, S_C, 32)
            if m == 34:
                self.poll_check(220)
                self.y_load()
            if m + 2 < 43:
                if m + 2 == 28:
                    p.wait_vm(*[t for j in range(14, 19) for t in self.tw2[j]]); p('s_barrier')
                if m + 2 == 38:
                    p.wait_vm(*[t for j in range(19, 22) for t in self.tw2[j]]); p('s_barrier')
                reads(m + 2)
            hf = self.G2_H + 4*(m % self.G2_NH)
            for dt in range(2):
                acc = self.G2_ACC[dt]
                p(f'v_mfma_f32_32x32x16_bf16 {vr(acc,16)}, {vr(W[m % 4] + 4*dt, 4)}, {vr(hf,4)}, {"0" if m == 0 else vr(acc,16)}')
            if m + PF < 43: self.h_load(m + PF)
            n = min(len(pending), 4)
            p.ins += pending[:n]; pending = pending[n:]
        assert not pending

    def final(self):
        p = self.p; A0, A1 = self.G2_ACC; F = 48; R = 64; Y = 80; PK = 96
        XB = 4*SLOT
        p.wait_vm(*self.tyl)
        p.barrier()
        p(f's_lshl_b32 s{S_T}, s{S_W}, 12')
        p(f's_add_u32 s{S_T}, s{S_T}, {XB}')
        p(f'v_lshlrev_b32 v12, 4, v{V_LANE}')
        p(f'v_add_u32 v13, s{S_T}, v12')
        a, b = Prog(), Prog()
        for g in range(4):
            a(f'ds_write_b128 v13, {vr(A1 + 4*g, 4)} offset:{1024*g}')
            b(f'ds_write_b128 v13, {vr(A0 + 4*g, 4)} offset:{1024*g}')
        p.ifelse(S_WB, a, b, self.lab('fe'), self.lab('fe'))
        p(f"""
        v_lshrrev_b32 v2, 5, v{V_LANE}
        v_lshrrev_b32 v3, 2, v{V_LANE}
        v_and_b32 v3, 3, v3
        v_lshl_add_u32 v3, v2, 2, v3
        s_lshl_b32 s{S_T}, s{S_WB}, 5
        v_add_u32 v3, s{S_T}, v3
        v_lshlrev_b32 v3, 7, v3
        v_lshrrev_b32 v4, 4, v{V_LANE}
        v_and_b32 v4, 1, v4
        v_lshl_add_u32 v3, v4, 5, v3
        v_and_b32 v4, 3, v{V_LANE}
        v_lshl_add_u32 v3, v4, 3, v3
        s_lshl_b32 s{S_T}, s{S_WA}, 6
        s_add_u32 s{S_T}, s{S_T}, {3*SLOT}
        v_add_u32 v3, s{S_T}, v3
        """)
        for g in range(4): p(f'ds_read_b64_tr_b16 {vr(Y + 2*g, 2)}, v3 offset:{1024*g}')
        p('s_barrier')
        p(f's_xor_b32 s{S_T}, s{S_W}, 1')
        p(f's_lshl_b32 s{S_T}, s{S_T}, 12')
        p(f's_add_u32 s{S_T}, s{S_T}, {XB}')
        p(f'v_add_u32 v13, s{S_T}, v12')
        for g in range(4): p(f'ds_read_b128 {vr(R + 4*g, 4)}, v13 offset:{1024*g}')
        p.wait_lgkm0()
        a, b = Prog(), Prog()
        for k in range(16):
            a(f'v_add_f32 v{F+k}, v{A0+k}, v{R+k}')
            b(f'v_add_f32 v{F+k}, v{A1+k}, v{R+k}')
        p.ifelse(S_WB, a, b, self.lab('fe'), self.lab('fe'))
        for k in range(16):
            p(f'v_accvgpr_read_b32 v{R+k}, a{self.A_INIT+k}')
            if k % 2 == 0: p(f'v_lshlrev_b32 v14, 16, v{Y + k//2}')
            else: p(f'v_and_b32 v14, 0xffff0000, v{Y + k//2}')
            p(f'v_add_f32 v{F+k}, v{F+k}, v{R+k}')
            p(f'v_add_f32 v{F+k}, v{F+k}, v14')
            if k % 2: p(f'v_cvt_pk_bf16_f32 v{PK + k//2}, v{F+k-1}, v{F+k}')
        for t in range(2):
            p(f'v_permlane32_swap_b32 v{PK+4*t}, v{PK+4*t+2}')
            p(f'v_permlane32_swap_b32 v{PK+4*t+1}, v{PK+4*t+3}')
        p(f"""
        v_and_b32 v2, 31, v{V_LANE}
        v_lshrrev_b32 v3, 5, v{V_LANE}
        v_lshlrev_b32 v2, 10, v2
        v_lshl_add_u32 v2, v3, 4, v2
        s_lshl_b32 s{S_T}, s{S_R}, 16
        s_lshl_b32 s{S_T+1}, s{S_WA}, 15
        s_add_u32 s{S_T}, s{S_T}, s{S_T+1}
        s_lshl_b32 s{S_T+1}, s{S_C}, 7
        s_add_u32 s{S_T}, s{S_T}, s{S_T+1}
        s_lshl_b32 s{S_T+1}, s{S_WB}, 6
        s_add_u32 s{S_T}, s{S_T}, s{S_T+1}
        """)
        for t in range(2):
            p(f'buffer_store_dwordx4 {vr(PK+4*t,4)}, v2, {srd(SRD_OUT)}, s{S_T} offen offset:{32*t}')

    def finish(self):
        p = self.p
        self.stamp_store()
        p('s_waitcnt vmcnt(0) lgkmcnt(0)')
        p('L_exit:')
        p('s_endpgm')
        p('L_code_end:')

    def build(self):
        self.code_rounds = 2
        p = self.p
        self.tw1, self.tw2 = {}, {}
        self.prologue()
        self.nonce_write()
        self.stamp('start')
        self.kgen_loads()
        self.small_loads()
        self.dma_setup()
        self.dma_x()
        self.l2_prefetch(SRD_W1, 252)
        for ch in range(6): self.dma_w1(ch)
        self.l2_prefetch(SRD_W2, 254)
        self.stamp('issued')
        self.kgen()
        self.stamp('kgen')
        if self.stop == 'kgen':
            self.dump_lds(L_KR, 2*KR_CH, WS_DBG, 2*KR_CH)
            self.finish(); return self.text()
        p.barrier()
        self.nonce_issue(220)
        for ch in range(6, 10): self.dma_w1(ch)
        self.small_tables()
        p.wait_vm(*self.tx)
        p.barrier()
        self.stamp('xready')
        self.stats()
        self.stamp('stats')
        self.nonce_check(220)
        self.xnt()
        self.stamp('xnt')
        self.xfrags()
        self.gemm1_setup()
        p.barrier()
        for ch in range(10, 18): self.dma_w1(ch)
        self.stamp('xfrag')
        if self.stop == 'stats':
            p.wait_vm(*self.txnt); self.finish(); return self.text()
        self.gemm1()
        self.stamp('gemm1')
        if self.stop == 'gemm1':
            self.finish(); return self.text()
        self.poll_issue(220, WS_F1, S_C, 32)
        self.poll_check(220)
        self.conv_loads()
        self.conv_prep()
        self.stamp('cvprep')
        side = []
        for j in range(14): side += self.sub(self.dma_w2, j)[0]
        p.wait_vm(*self.th)
        p.barrier()
        self.flag_store(WS_F2, S_R, S_C)
        self.conv_main(side)
        self.stamp('cvmain')
        self.gemm2_setup()
        self.poll_issue(220, WS_F2, S_R, 8)
        self.poll_check(220)
        self.stamp('hready')
        for m in range(12): self.h_load(m)
        self.conv_epilogue()
        self.stamp('cvepi')
        if self.stop == 'conv':
            p.wait_vm(*self.ty); self.finish(); return self.text()
        p.barrier()
        self.gemm2()
        self.stamp('gemm2')
        self.final()
        self.stamp('final')
        self.finish()
        return self.text()

    def text(self):
        lines = finalize(self.p.ins, verbose=True)
        body = '\n'.join(('    ' + l if not l.strip().endswith(':') and not l.startswith('    ') else l) for l in lines)
        hdr = open('cdna_kernels/' + KNAME[:-7] + '.s.ref').read().split('; Override launch')[0]
        return f"""{hdr}; @launch grid=(256,1,1) block=(256,1,1) lds={L_END}
.amdgcn_target "amdgcn-amd-amdhsa--gfx950"
.text
.globl {KNAME}
.p2align 8
.type {KNAME},@function
{KNAME}:
{body}
.fill 64, 4, 0xbf800000
.section .rodata,"a"
.p2align 6
.amdhsa_kernel {KNAME}
  .amdhsa_next_free_vgpr 512
  .amdhsa_next_free_sgpr 102
  .amdhsa_accum_offset 256
  .amdhsa_group_segment_fixed_size 0
  .amdhsa_kernarg_size 136
  .amdhsa_user_sgpr_count 2
  .amdhsa_user_sgpr_kernarg_segment_ptr 1
  .amdhsa_system_sgpr_workgroup_id_x 1
.end_amdhsa_kernel
"""

if __name__ == '__main__':
    stop = sys.argv[2] if len(sys.argv) > 2 and sys.argv[2] != 'none' else None
    prof = len(sys.argv) > 3 and sys.argv[3] == 'prof'
    g = Gen(stop=stop, profile=prof)
    open(sys.argv[1], 'w').write(g.build())
    open(sys.argv[1] + '.stamps', 'w').write(' '.join(g.stamp_names))
```
